```python
import torch

def _softmax(x, axis=-1):
    return torch.softmax(x, dim=axis)
def _gelu(x):
    return torch.nn.functional.gelu(x, approximate="tanh")
def _silu(x):
    return torch.nn.functional.silu(x)
def _sigmoid(x):
    return torch.sigmoid(x)
def _layernorm(x, axis=-1, eps=1e-5):
    m = x.mean(dim=axis, keepdim=True)
    v = x.var(dim=axis, keepdim=True, unbiased=False)
    return (x - m) / torch.sqrt(v + eps)
def _scatter_add(tgt, idx, src, axis=0):
    return tgt.clone().index_add_(axis, idx, src)
def _segment_sum(src, seg, n):
    out = torch.zeros((n,) + src.shape[1:], dtype=src.dtype)
    return out.index_add_(0, seg, src)
def _pad(x, pw):
    flat = tuple(v for pair in reversed(pw) for v in pair)
    return torch.nn.functional.pad(x, flat)

kernel_name = 'concat_heads__gqa_block_cached__mha_block_cached__near_ridge'

def setup_inputs():

    _w = (lambda a: (lambda t: t.to(torch.bfloat16) if t.is_floating_point() else t)(torch.as_tensor(a)))
    def _A_setup():
        B, Sq, D = 16, 32, 512
        Hq, Hkv, Sk, Dh = 32, 8, 512, 128
        assert Hq % Hkv == 0, (Hq, Hkv)
        return {
            "x": _w((lambda *s: torch.randn(*s, dtype=torch.bfloat16) * 0.8)(B, Sq, D)),
            "k_cache": _w((lambda *s: torch.randn(*s, dtype=torch.bfloat16) * 0.8)(B, Hkv, Sk, Dh)),
            "v_cache": _w((lambda *s: torch.randn(*s, dtype=torch.bfloat16) * 0.05)(B, Hkv, Sk, Dh)),
            "wq": _w((lambda *s: torch.randn(*s, dtype=torch.bfloat16) * 0.8)(D, Hq * Dh) * (D ** -0.5)),
            "wo": _w((lambda *s: torch.randn(*s, dtype=torch.bfloat16) * 0.05)(Hq * Dh, D) * ((Hq * Dh) ** -0.5)),
        }
    _A_in = _A_setup()

    def _B_setup():
        B, Sq, D = 16, 32, 512
        H, Sk, Dh = 32, 512, 128
        return {
            "x": _w((lambda *s: torch.randn(*s, dtype=torch.bfloat16) * 0.8)(B, Sq, D)),
            "k_cache": _w((lambda *s: torch.randn(*s, dtype=torch.bfloat16) * 0.8)(B, H, Sk, Dh)),
            "v_cache": _w((lambda *s: torch.randn(*s, dtype=torch.bfloat16) * 0.05)(B, H, Sk, Dh)),
            "wq": _w((lambda *s: torch.randn(*s, dtype=torch.bfloat16) * 0.8)(D, H * Dh) * (D ** -0.5)),
            "wo": _w((lambda *s: torch.randn(*s, dtype=torch.bfloat16) * 0.05)(H * Dh, D) * ((H * Dh) ** -0.5)),
        }
    _B_in = _B_setup()

    return {
        "A_x": _A_in["x"],
        "A_k_cache": _A_in["k_cache"],
        "A_v_cache": _A_in["v_cache"],
        "A_wq": _A_in["wq"],
        "A_wo": _A_in["wo"],
        "B_x": _B_in["x"],
        "B_k_cache": _B_in["k_cache"],
        "B_v_cache": _B_in["v_cache"],
        "B_wq": _B_in["wq"],
        "B_wo": _B_in["wo"],
    }

def reference(A_x, A_k_cache, A_v_cache, A_wq, A_wo, B_x, B_k_cache, B_v_cache, B_wq, B_wo):
    def _A_ref(x, k_cache, v_cache, wq, wo):
        B, Sq, D = x.shape
        Hq, Dh = 32, 128
        Hkv = k_cache.shape[1]
        rep = Hq // Hkv
        q = (lambda x, *d: x.permute(*d))((x @ wq).reshape(B, Sq, Hq, Dh), 0, 2, 1, 3)
        k = (lambda x, n, axis: torch.repeat_interleave(x, n, dim=axis))(k_cache, rep, axis=1)
        v = (lambda x, n, axis: torch.repeat_interleave(x, n, dim=axis))(v_cache, rep, axis=1)
        scores = torch.einsum("bhqd,bhkd->bhqk", q, k) * (Dh ** -0.5)
        p = _softmax(scores, axis=-1)
        o = torch.einsum("bhqk,bhkd->bhqd", p, v)
        return (lambda x, *d: x.permute(*d))(o, 0, 2, 1, 3).reshape(B, Sq, Hq * Dh) @ wo

    def _B_ref(x, k_cache, v_cache, wq, wo):
        B, Sq, D = x.shape
        H, Dh = 32, 128
        q = (lambda x, *d: x.permute(*d))((x @ wq).reshape(B, Sq, H, Dh), 0, 2, 1, 3)
        scores = torch.einsum("bhqd,bhkd->bhqk", q, k_cache) * (Dh ** -0.5)
        p = _softmax(scores, axis=-1)
        o = torch.einsum("bhqk,bhkd->bhqd", p, v_cache)
        return (lambda x, *d: x.permute(*d))(o, 0, 2, 1, 3).reshape(B, Sq, H * Dh) @ wo

    a = _A_ref(A_x, A_k_cache, A_v_cache, A_wq, A_wo)
    b = _B_ref(B_x, B_k_cache, B_v_cache, B_wq, B_wo)
    return torch.concatenate([a, b], axis=-1)
```

```python
import re

_RANGE = re.compile(r'\b([vas])\[(\d+):(\d+)\]')
_SINGLE = re.compile(r'\b([vas])(\d+)\b')
TRANS = ("v_exp_f32", "v_rcp_f32", "v_log_f32", "v_rsq_f32", "v_sqrt_f32", "v_sin_f32", "v_cos_f32")


def regs_of(tok):
    out = set()
    for m in _RANGE.finditer(tok):
        for i in range(int(m.group(2)), int(m.group(3)) + 1):
            out.add((m.group(1), i))
    t2 = _RANGE.sub(" ", tok)
    for m in _SINGLE.finditer(t2):
        out.add((m.group(1), int(m.group(2))))
    for name in ("m0", "vcc", "exec"):
        if re.search(r'\b' + name + r'\b', t2):
            out.add((name, 0))
    return out


def split_ops(s):
    ops, depth, cur = [], 0, ""
    for ch in s:
        if ch == '[':
            depth += 1
        if ch == ']':
            depth -= 1
        if ch == ',' and depth == 0:
            ops.append(cur.strip())
            cur = ""
        else:
            cur += ch
    if cur.strip():
        ops.append(cur.strip())
    return ops


class Ins:
    __slots__ = ("text", "kind", "rd", "wr", "srcab", "srcc", "states", "wide_store", "mn")

    def __init__(self, text):
        self.text = text
        t = text.split(";")[0].strip()
        self.rd, self.wr, self.srcab, self.srcc = set(), set(), set(), set()
        self.states = 1
        self.wide_store = set()
        if t.endswith(":") or t.startswith(".") or not t:
            self.kind, self.mn, self.states = "label", "", 0
            return
        parts = t.split(None, 1)
        mn = self.mn = parts[0]
        ops = split_ops(parts[1]) if len(parts) > 1 else []
        R = [regs_of(o) for o in ops]
        allr = set().union(*R) if R else set()
        if mn.startswith("v_mfma"):
            self.kind = "mfma"
            self.wr = R[0]
            self.srcab = R[1] | R[2]
            self.srcc = R[3]
            self.rd = self.srcab | self.srcc
        elif mn.startswith("v_"):
            self.kind = "trans" if mn.replace("_e32", "").replace("_e64", "") in TRANS else "valu"
            if mn.startswith("v_permlane"):
                self.wr = R[0] | R[1]
                self.rd = R[0] | R[1]
            else:
                self.wr = set(R[0])
                self.rd = set().union(*R[1:]) if len(R) > 1 else set()
                if mn.startswith("v_fmac") or mn.startswith("v_pk_fmac"):
                    self.rd |= R[0]
                if mn.startswith("v_cndmask") and len(R) == 3:
                    self.rd.add(("vcc", 0))
        elif mn.startswith("ds_read") or mn.startswith("ds_bpermute") or mn.startswith("ds_swizzle"):
            self.kind = "dsr"
            self.wr = R[0]
            self.rd = set().union(*R[1:])
        elif mn.startswith("ds_"):
            self.kind = "dsw"
            self.rd = allr
        elif mn.startswith("buffer_load") or mn.startswith("global_load"):
            if re.search(r'\blds\b', t):
                self.kind = "dma"
                self.rd = allr | {("m0", 0)}
            else:
                self.kind = "vload"
                self.wr = R[0]
                self.rd = set().union(*R[1:])
        elif mn.startswith("buffer_store") or mn.startswith("global_store") or mn.startswith("buffer_atomic") or mn.startswith("global_atomic"):
            self.kind = "vstore"
            self.rd = allr
            if "x4" in mn or "x3" in mn:
                self.wide_store = R[0] if mn.startswith("buffer") else R[1]
            if "atomic" in mn and re.search(r'\bsc0\b', t):
                self.wr = R[0]
        elif mn.startswith("buffer_inv") or mn.startswith("buffer_wbl2"):
            self.kind = "vstore"
        elif mn == "s_nop":
            self.kind = "nop"
            self.states = int(ops[0], 0) + 1
        elif mn.startswith("s_"):
            self.kind = "salu"
            if mn.startswith("s_cmp") or mn.startswith("s_cbranch") or mn in ("s_waitcnt", "s_barrier", "s_branch", "s_endpgm", "s_setprio", "s_sleep", "s_setpc_b64"):
                self.rd = allr
            else:
                self.wr = R[0] if R else set()
                self.rd = set().union(*R[1:]) if len(R) > 1 else set()
                if "saveexec" in mn:
                    self.wr = self.wr | {("exec", 0)}
        else:
            raise ValueError("unknown instruction: " + text)


def _need(p, c):
    n = 0
    isv = lambda s: {r for r in s if r[0] in "va"}
    iss = lambda s: {r for r in s if r[0] == "s" or r[0] == "vcc"}
    if p.kind in ("valu", "trans"):
        pv = isv(p.wr)
        if c.kind == "mfma" and pv & c.rd:
            n = max(n, 2)
        if c.mn.startswith("v_permlane") and pv & c.rd:
            n = max(n, 2)
        if (c.mn.startswith("v_readfirstlane") or c.mn.startswith("v_readlane")) and pv & c.rd:
            n = max(n, 1)
        if p.kind == "trans" and c.kind != "trans" and pv & c.rd:
            n = max(n, 1)
        ps = iss(p.wr)
        if ps:
            if c.kind in ("dma", "vload", "vstore") and ps & c.rd:
                n = max(n, 5)
            if c.kind in ("valu", "trans") and ps & c.rd:
                n = max(n, 2)
            if c.kind == "salu" and ps & c.rd:
                n = max(n, 2)
        if ("exec", 0) in p.wr and c.kind == "mfma":
            n = max(n, 4)
    if p.kind == "mfma":
        passes8 = "32x32" in p.mn
        big = 12 if passes8 else 8
        if c.kind == "mfma":
            if p.wr & c.srcab:
                n = max(n, big)
            if p.wr & c.srcc and p.wr != c.srcc:
                n = max(n, big - 2)
            if p.wr & c.wr and not (p.wr & c.srcc):
                n = max(n, big)
        elif c.kind in ("valu", "trans", "dsr", "dsw", "dma", "vload", "vstore"):
            if p.wr & (c.rd | c.wr):
                n = max(n, big)
            if c.kind in ("valu", "trans") and p.srcc & c.wr:
                n = max(n, 7 if passes8 else 3)
    if p.kind == "salu" and ("m0", 0) in p.wr and c.kind == "dma":
        n = max(n, 1)
    if p.kind == "vstore" and p.wide_store and p.wide_store & c.wr:
        n = max(n, 2)
    return n


class Asm:
    def __init__(self):
        self.ins = []
        self.vm = 0
        self.lg = 0
        self.vm_done = 0
        self.lg_done = 0

    def e(self, text):
        i = Ins(text)
        self.ins.append(i)
        if i.kind in ("dma", "vload", "vstore"):
            self.vm += 1
            return self.vm
        if i.kind in ("dsr", "dsw"):
            self.lg += 1
            return self.lg
        return None

    def raw(self, text):
        i = Ins("")
        i.text = text
        self.ins.append(i)

    def wait_vm(self, tok):
        if tok <= self.vm_done:
            return
        n = self.vm - tok
        self.e(f"s_waitcnt vmcnt({min(n, 63)})")
        self.vm_done = self.vm - min(n, 63)

    def wait_lg(self, tok=None):
        if tok is None:
            tok = self.lg
        if tok <= self.lg_done:
            return
        n = self.lg - tok
        self.e(f"s_waitcnt lgkmcnt({min(n, 15)})")
        self.lg_done = self.lg - min(n, 15)

    def reset_counters(self):
        self.vm = self.lg = self.vm_done = self.lg_done = 0

    def finalize(self):
        out = []
        for c in self.ins:
            if c.kind != "label":
                need = 0
                dist = 0
                for p in reversed(out):
                    if dist >= 20:
                        break
                    if p.kind != "label":
                        k = _need(p, c)
                        if k > dist:
                            need = max(need, k - dist)
                    dist += p.states
                while need > 0:
                    k = min(need, 16)
                    out.append(Ins(f"s_nop {k-1}"))
                    need -= k
            out.append(c)
        return "\n".join(("" if i.kind == "label" else "    ") + i.text for i in out) + "\n"
```

```python
import sys
import struct
from asmlib import Asm

NAME = "concat_heads__gqa_block_cached__mha_block_cached__near_ridge"
HEADER = open("cdna_kernels/" + NAME + ".s.ref").read().split("; Override launch")[0]

L_KV = 0
L_W = 65536
L_X = 114688
L_Q = 147456
LDS_BYTES = 163840

S_WAVE, S_XCD, S_B, S_P, S_H0 = 26, 27, 28, 29, 30
S_HF, S_J = 31, 32
SRD = dict(Ax=36, Ak=40, Av=44, Awq=48, Awo=52, Bx=56, Bk=60, Bv=64, Bwq=68, Bwo=72, ws=76)
S_XOFF, S_WQOFF, S_WOOFF, S_KVA, S_KVB = 80, 81, 82, 83, 84
S_LKV, S_LKVP, S_LW, S_LXD = 85, 86, 87, 88
S_POFF, S_PFQ, S_PFO, S_C = 89, 90, 91, 92
S_T0, S_T1, S_T2 = 93, 94, 95
S_LPART, S_LKVPR = 96, 97
S_STAMP = 4

V_LANE, V_LIN, V_CK, V_CV, V_CWO, V_CWQ = 0, 1, 2, 3, 4, 5
V_DK, V_DV, V_DWO, V_DWQ = 6, 10, 11, 15
V_RD = 19
V_M, V_NMC, V_L0, V_L1, V_T = 27, 28, 29, 30, 31
V_S, V_O, V_F = 32, 160, 224
V_Q = V_O + 32

SCALE_LOG2E = 0.08838834764831845 * 1.4426950408889634


def f32bits(x):
    return struct.unpack("<I", struct.pack("<f", x))[0]


def vr(base, n):
    return f"v[{base}:{base+n-1}]"


def ar(base, n):
    return f"a[{base}:{base+n-1}]"


def sr(base, n=4):
    return f"s[{base}:{base+n-1}]"


class Cfg:
    kv_pol = " nt"
    w_pol = ""
    st_pol = ""
    red_pol = ""
    stamps = False
    order_bit = 4
    force_order = None
    code_prefetch = True


def setup_common(a, cfg):
    e = a.e
    e("s_cmp_ge_u32 s2, 256")
    e("s_cbranch_scc1 L_end")
    e("s_load_dwordx16 s[4:19], s[0:1], 0")
    e("s_load_dwordx4 s[20:23], s[0:1], 64")
    e("s_load_dwordx2 s[24:25], s[0:1], 96")
    e("v_lshrrev_b32 v1, 6, v0")
    e(f"v_and_b32 v{V_LANE}, 63, v0")
    e(f"v_readfirstlane_b32 s{S_WAVE}, v1")
    e(f"s_and_b32 s{S_XCD}, s2, 7")
    e(f"s_lshr_b32 s{S_B}, s2, 4")
    e(f"s_bfe_u32 s{S_P}, s2, 0x10003")
    e(f"s_lshl_b32 s{S_H0}, s{S_XCD}, 2")
    e(f"s_lshl_b32 s{S_T0}, s{S_P}, 1")
    e(f"s_add_u32 s{S_H0}, s{S_H0}, s{S_T0}")
    e(f"s_lshr_b32 s{S_HF}, s{S_WAVE}, 1")
    e(f"s_and_b32 s{S_J}, s{S_WAVE}, 1")
    L = V_LANE
    t0, t1, t2, t3 = 32, 33, 34, 35
    e(f"v_lshlrev_b32 v{V_LIN}, 4, v{L}")
    e(f"v_lshrrev_b32 v{t0}, 5, v{L}")
    e(f"v_and_b32 v{t1}, 15, v{L}")
    e(f"v_xor_b32 v{t2}, v{t0}, v{t1}")
    e(f"v_and_b32 v{t3}, 31, v{L}")
    e(f"v_lshlrev_b32 v{t3}, 8, v{t3}")
    e(f"v_lshl_or_b32 v{V_CK}, v{t2}, 4, v{t3}")
    rr, cc, gi, bs = 36, 37, 38, 39
    e(f"v_bfe_u32 v{rr}, v{L}, 2, 2")
    e(f"v_and_b32 v{cc}, 3, v{L}")
    e(f"v_bfe_u32 v{gi}, v{L}, 4, 1")
    e(f"v_and_b32 v{t2}, 1, v{cc}")
    e(f"v_lshrrev_b32 v{t3}, 1, v{cc}")
    e(f"v_lshl_or_b32 v{bs}, v{t2}, 1, v{t3}")
    e(f"v_lshl_add_u32 v{t2}, v{t0}, 2, v{rr}")
    e(f"v_lshlrev_b32 v{t2}, 8, v{t2}")
    e(f"v_lshl_add_u32 v{t2}, v{rr}, 6, v{t2}")
    e(f"v_lshl_add_u32 v{t2}, v{gi}, 5, v{t2}")
    e(f"v_lshl_add_u32 v{V_CV}, v{cc}, 3, v{t2}")
    e(f"v_lshl_add_u32 v{V_CWO}, v{bs}, 3, v{t2}")
    e(f"v_lshlrev_b32 v{t2}, 10, v{t0}")
    e(f"v_lshl_add_u32 v{t2}, v{rr}, 7, v{t2}")
    e(f"v_lshrrev_b32 v{t3}, 1, v{rr}")
    e(f"v_lshl_add_u32 v{t2}, v{t3}, 6, v{t2}")
    e(f"v_lshl_add_u32 v{t2}, v{gi}, 5, v{t2}")
    e(f"v_lshl_add_u32 v{V_CWQ}, v{bs}, 3, v{t2}")
    l4 = 40
    e(f"v_lshrrev_b32 v{l4}, 4, v{L}")
    e(f"v_xor_b32 v{t2}, v{t1}, v{l4}")
    e(f"v_lshlrev_b32 v{t3}, 8, v{l4}")
    e(f"v_lshl_or_b32 v{V_DK}, v{t2}, 4, v{t3}")
    for i in range(1, 4):
        e(f"v_xor_b32 v{V_DK+i}, {64*i}, v{V_DK}")
    e(f"v_lshlrev_b32 v{t2}, 2, v{l4}")
    e(f"v_xor_b32 v{t2}, v{t1}, v{t2}")
    e(f"v_lshl_or_b32 v{V_DV}, v{t2}, 4, v{t3}")
    e(f"v_lshlrev_b32 v{t3}, 10, v{l4}")
    e(f"v_lshl_or_b32 v{V_DWO}, v{t2}, 4, v{t3}")
    for i in range(1, 4):
        e(f"v_add_u32 v{V_DWO+i}, {i*(4096-1024)}, v{V_DWO}")
    e(f"v_and_b32 v{t2}, 7, v{L}")
    e(f"v_lshlrev_b32 v{t3}, 2, v{gi}")
    e(f"v_xor_b32 v{t2}, v{t2}, v{t3}")
    e(f"v_lshrrev_b32 v{t3}, 3, v{L}")
    e(f"v_lshlrev_b32 v{t3}, 13, v{t3}")
    e(f"v_lshl_or_b32 v{V_DWQ}, v{t2}, 4, v{t3}")
    for i in range(1, 4):
        e(f"v_add_u32 v{V_DWQ+i}, {i*(65536-1024)}, v{V_DWQ}")
    W, B_, H0 = S_WAVE, S_B, S_H0
    e(f"s_lshl_b32 s{S_XOFF}, s{B_}, 15")
    e(f"s_lshl_b32 s{S_T0}, s{W}, 13")
    e(f"s_add_u32 s{S_XOFF}, s{S_XOFF}, s{S_T0}")
    e(f"s_add_u32 s{S_LXD}, s{S_T0}, {L_X}")
    e(f"s_lshl_b32 s{S_WQOFF}, s{H0}, 8")
    e(f"s_lshl_b32 s{S_T0}, s{W}, 7")
    e(f"s_add_u32 s{S_WQOFF}, s{S_WQOFF}, s{S_T0}")
    e(f"s_lshl_b32 s{S_WOOFF}, s{H0}, 17")
    e(f"s_lshl_b32 s{S_T0}, s{W}, 8")
    e(f"s_add_u32 s{S_WOOFF}, s{S_WOOFF}, s{S_T0}")
    e(f"s_lshl_b32 s{S_T1}, s{S_HF}, 16")
    e(f"s_lshl_b32 s{S_KVA}, s{B_}, 3")
    e(f"s_add_u32 s{S_KVA}, s{S_KVA}, s{S_XCD}")
    e(f"s_lshl_b32 s{S_KVA}, s{S_KVA}, 17")
    e(f"s_add_u32 s{S_KVA}, s{S_KVA}, s{S_T1}")
    e(f"s_lshl_b32 s{S_T0}, s{S_J}, 12")
    e(f"s_add_u32 s{S_KVA}, s{S_KVA}, s{S_T0}")
    e(f"s_lshl_b32 s{S_KVB}, s{B_}, 5")
    e(f"s_add_u32 s{S_KVB}, s{S_KVB}, s{H0}")
    e(f"s_add_u32 s{S_KVB}, s{S_KVB}, s{S_J}")
    e(f"s_lshl_b32 s{S_KVB}, s{S_KVB}, 17")
    e(f"s_add_u32 s{S_KVB}, s{S_KVB}, s{S_T1}")
    e(f"s_lshl_b32 s{S_LKV}, s{W}, 14")
    e(f"s_lshl_b32 s{S_LKVPR}, s{S_HF}, 15")
    e(f"s_add_u32 s{S_LKVP}, s{S_LKVPR}, s{S_T0}")
    e(f"s_xor_b32 s{S_LPART}, s{S_LKV}, 0x8000")
    e(f"s_mul_i32 s{S_LW}, s{W}, 12288")
    e(f"s_add_u32 s{S_LW}, s{S_LW}, {L_W}")
    e(f"s_lshl_b32 s{S_POFF}, s2, 16")
    e(f"s_lshl_b32 s{S_T0}, s{W}, 13")
    e(f"s_add_u32 s{S_POFF}, s{S_POFF}, s{S_T0}")
    e(f"s_lshl_b32 s{S_PFQ}, s{B_}, 5")
    e(f"s_lshl_b32 s{S_T0}, s{W}, 3")
    e(f"s_add_u32 s{S_PFQ}, s{S_PFQ}, s{S_T0}")
    e(f"s_lshl_b32 s{S_PFQ}, s{S_PFQ}, 13")
    e(f"s_lshl_b32 s{S_T0}, s{H0}, 8")
    e(f"s_add_u32 s{S_PFQ}, s{S_PFQ}, s{S_T0}")
    e(f"s_lshl_b32 s{S_PFO}, s{B_}, 4")
    e(f"s_lshl_b32 s{S_T0}, s{W}, 2")
    e(f"s_add_u32 s{S_PFO}, s{S_PFO}, s{S_T0}")
    e(f"s_lshl_b32 s{S_PFO}, s{S_PFO}, 10")
    e(f"s_lshl_b32 s{S_T0}, s{H0}, 17")
    e(f"s_add_u32 s{S_PFO}, s{S_PFO}, s{S_T0}")
    e(f"s_mov_b32 s{S_C}, {f32bits(SCALE_LOG2E):#x}")
    e("s_waitcnt lgkmcnt(0)")
    ptr = dict(Ax=4, Ak=6, Av=8, Awq=10, Awo=12, Bx=14, Bk=16, Bv=18, Bwq=20, Bwo=22, ws=24)
    size = dict(Ax=524288, Ak=16777216, Av=16777216, Awq=4194304, Awo=4194304, Bx=524288, Bk=67108864, Bv=67108864,
                Bwq=4194304, Bwo=4194304, ws=268435456)
    for k, d in SRD.items():
        e(f"s_mov_b32 s{d}, s{ptr[k]}")
        e(f"s_and_b32 s{d+1}, s{ptr[k]+1}, 0xffff")
        e(f"s_mov_b32 s{d+2}, {size[k]}")
        e(f"s_mov_b32 s{d+3}, 0x20000")


class Prog:
    def __init__(self, a, cfg, mats):
        self.a, self.cfg, self.mats = a, cfg, mats
        m1, m2 = mats
        self.stream = ([("W", "q", m1, g) for g in range(16)] + [("T", m1, t) for t in range(16)] +
                       [("W", "o", m1, g) for g in range(16)] + [("W", "o", m2, g) for g in range(16)] +
                       [("W", "q", m2, g) for g in range(16)] + [("T", m2, t) for t in range(16)])
        self.pos = 0
        self.tok = {}
        self.wcount = 0
        self.wslot = {}
        self.w_free = 3
        self.kv_free = {0: True, 1: True, 2: True, 3: True}
        self.hooks = {}
        self.nst = 0

    def stamp(self):
        if self.cfg.stamps and self.nst < 11:
            self.a.e(f"s_memrealtime s[{S_STAMP+2*self.nst}:{S_STAMP+2*self.nst+1}]")
            self.a.e("s_waitcnt lgkmcnt(0)")
            self.a.lg_done = self.a.lg
            self.nst += 1

    def nslots(self, m):
        return 4 if m == "A" else 2

    def pump(self):
        a, e = self.a, self.a.e
        while self.pos < len(self.stream):
            it = self.stream[self.pos]
            if it[0] == "W":
                if self.w_free == 0:
                    return
            else:
                if not self.kv_free[it[2] % self.nslots(it[1])]:
                    return
            if self.pos in self.hooks:
                self.hooks.pop(self.pos)()
            if it[0] == "W":
                _, kind, m, g = it
                slot = self.wcount % 3
                self.wcount += 1
                self.w_free -= 1
                self.wslot[it] = slot
                if kind == "q":
                    srd, so, step, vo = SRD[m + "wq"], S_WQOFF, 262144, V_DWQ
                else:
                    srd, so, step, vo = SRD[m + "wo"], S_WOOFF, 16384, V_DWO
                e(f"s_add_u32 s{S_T0}, s{so}, {g*step}")
                e(f"s_add_u32 m0, s{S_LW}, {slot*4096}")
                for i in range(4):
                    tk = e(f"buffer_load_dwordx4 v{vo+i}, {sr(srd)}, s{S_T0} offen offset:{i*1024}{self.cfg.w_pol} lds")
                self.tok[it] = tk
            else:
                _, m, t = it
                slot = t % self.nslots(m)
                self.kv_free[slot] = False
                isv = t >= 8
                srd = SRD[m + ("v" if isv else "k")]
                halves = [0] if m == "A" else [0, 1]
                for hf in halves:
                    so = S_KVA if m == "A" else S_KVB
                    lb = S_LKVP if m == "A" else S_LKV
                    e(f"s_add_u32 s{S_T0}, s{so}, {(t & 7)*8192 + hf*4096}")
                    e(f"s_add_u32 m0, s{lb}, {slot*8192 + hf*4096}")
                    for i in range(4):
                        vo = V_DV if isv else V_DK + i
                        tk = e(f"buffer_load_dwordx4 v{vo}, {sr(srd)}, s{S_T0} offen offset:{i*1024}{self.cfg.kv_pol} lds")
                self.tok[it] = tk
            self.pos += 1

    def dma_x(self, m):
        a, e = self.a, self.a.e
        tmp = V_T
        for i in range(8):
            e(f"s_lshl_b32 s{S_T1}, s{S_J}, 7")
            e(f"s_xor_b32 s{S_T1}, s{S_T1}, {i*16}")
            e(f"v_xor_b32 v{tmp}, s{S_T1}, v{V_LIN}")
            e(f"s_add_u32 s{S_T0}, s{S_XOFF}, {i*1024}")
            e(f"s_add_u32 m0, s{S_LXD}, {i*1024}")
            tk = e(f"buffer_load_dwordx4 v{tmp}, {sr(SRD[m+'x'])}, s{S_T0} offen lds")
        return tk

    def prefetch_wq(self):
        e = self.a.e
        t = 40
        e(f"v_lshrrev_b32 v{t}, 5, v{V_LANE}")
        e(f"v_lshlrev_b32 v{t}, 13, v{t}")
        e(f"v_and_b32 v{t+1}, 31, v{V_LANE}")
        e(f"v_lshl_or_b32 v{t}, v{t+1}, 4, v{t}")
        for m in self.mats:
            for i in range(4):
                e(f"s_add_u32 s{S_T0}, s{S_PFQ}, {i*16384}")
                e(f"buffer_load_dwordx4 {ar(0,4)}, v{t}, {sr(SRD[m+'wq'])}, s{S_T0} offen")

    def prefetch_wo(self):
        e = self.a.e
        for m in self.mats:
            for i in range(4):
                e(f"buffer_load_dwordx4 {ar(0,4)}, v{V_LIN}, {sr(SRD[m+'wo'])}, s{S_PFO} offen offset:{i*1024}")

    def w_release(self):
        self.w_free += 1
        self.pump()

    def qproj(self, m):
        a, e = self.a, self.a.e
        acc = V_O
        xr = 32
        for mt in range(2):
            e(f"v_xor_b32 v{V_RD+mt}, {mt*64}, v{V_CWQ}")
            e(f"v_add_u32 v{V_RD+mt}, s{S_LW}, v{V_RD+mt}")
        e(f"v_and_b32 v{V_T}, 31, v{V_LANE}")
        e(f"v_mul_u32_u24 v{V_T}, 768, v{V_T}")
        e(f"v_add_u32 v{V_T}, v{V_T}, v{V_CK}")
        e(f"v_add_u32 v{xr}, {L_X}, v{V_T}")
        for i in range(1, 8):
            e(f"v_xor_b32 v{xr+i}, {32*i}, v{xr}")

        def mfmas(g):
            fb = V_F + (g & 1) * 16
            xb = V_O + 32 + (g & 1) * 8
            for ks in range(2):
                for mt in range(2):
                    c = "0" if (g == 0 and ks == 0) else vr(acc + 16 * mt, 16)
                    e(f"v_mfma_f32_32x32x16_bf16 {vr(acc+16*mt,16)}, {vr(fb+(ks*2+mt)*4,4)}, {vr(xb+ks*4,4)}, {c}")

        for g in range(16):
            it = ("W", "q", m, g)
            a.wait_vm(self.tok[it])
            slot = self.wslot[it]
            fb = V_F + (g & 1) * 16
            xb = V_O + 32 + (g & 1) * 8
            for ks in range(2):
                s = 2 * g + ks
                e(f"ds_read_b128 {vr(xb+ks*4,4)}, v{xr+(s&7)} offset:{(s>>3)*256}")
                for mt in range(2):
                    for jh in range(2):
                        e(f"ds_read_b64_tr_b16 {vr(fb+(ks*2+mt)*4+jh*2,2)}, v{V_RD+mt} offset:{slot*4096+ks*2048+jh*512}")
            if g > 0:
                mfmas(g - 1)
            a.wait_lg()
            self.w_release()
        mfmas(15)
        pk = 48
        for mt in range(2):
            for k in range(8):
                e(f"v_cvt_pk_bf16_f32 v{pk+mt*8+k}, v{acc+16*mt+2*k}, v{acc+16*mt+2*k+1}")
        e(f"s_lshl_b32 s{S_T1}, s{S_WAVE}, 12")
        e(f"s_add_u32 s{S_T1}, s{S_T1}, {L_Q}")
        e(f"v_add_u32 v{V_T}, s{S_T1}, v{V_LIN}")
        for f in range(4):
            e(f"ds_write_b128 v{V_T}, {vr(pk+4*f,4)} offset:{f*1024}")
        a.wait_lg()
        e("s_barrier")

    def read_ofrags(self):
        a, e = self.a, self.a.e
        for ks in range(16):
            j, s = ks >> 3, ks & 7
            wp = 2 * (s >> 2) + j
            e(f"ds_read_b128 {vr(32+4*ks,4)}, v{V_LIN} offset:{L_KV + (wp ^ 2)*16384 + (s & 3)*1024}")
        a.wait_lg()

    def store_partial(self, m):
        a, e = self.a, self.a.e
        acc, pk = V_O, 96
        for k in range(32):
            e(f"v_cvt_pk_bf16_f32 v{pk+k}, v{acc+2*k}, v{acc+2*k+1}")
        mo = 0 if m == "A" else 32768
        for h in range(2):
            e(f"s_add_u32 s{S_T1}, s{S_POFF}, {mo + h*4096}")
            for i in range(4):
                e(f"buffer_store_dwordx4 {vr(pk+(h*4+i)*4,4)}, v{V_LIN}, {sr(SRD['ws'])}, s{S_T1} offen offset:{i*1024}{self.cfg.st_pol}")

    def wo_addrs(self):
        e = self.a.e
        for mt in range(4):
            e(f"v_xor_b32 v{V_RD+mt}, {mt*64}, v{V_CWO}")
            e(f"v_add_u32 v{V_RD+mt}, s{S_LW}, v{V_RD+mt}")

    def oproj_stream(self, m):
        a, e = self.a, self.a.e
        acc = V_O
        self.wo_addrs()
        self.read_ofrags()

        def mfmas(g):
            fb = V_F + (g & 1) * 16
            for mt in range(4):
                c = "0" if g == 0 else vr(acc + 16 * mt, 16)
                e(f"v_mfma_f32_32x32x16_bf16 {vr(acc+16*mt,16)}, {vr(fb+mt*4,4)}, {vr(32+4*g,4)}, {c}")

        for g in range(16):
            it = ("W", "o", m, g)
            a.wait_vm(self.tok[it])
            slot = self.wslot[it]
            fb = V_F + (g & 1) * 16
            for mt in range(4):
                for jh in range(2):
                    e(f"ds_read_b64_tr_b16 {vr(fb+mt*4+jh*2,2)}, v{V_RD+mt} offset:{slot*4096+jh*2048}")
            if g > 0:
                mfmas(g - 1)
            a.wait_lg()
            self.w_release()
        mfmas(15)
        self.store_partial(m)

    def wo_preload(self, m):
        a, e = self.a, self.a.e
        self.wo_addrs()
        for g in range(16):
            it = ("W", "o", m, g)
            a.wait_vm(self.tok[it])
            slot = self.wslot[it]
            for mt in range(4):
                for jh in range(2):
                    e(f"ds_read_b64_tr_b16 {ar(g*16+mt*4+jh*2,2)}, v{V_RD+mt} offset:{slot*4096+jh*2048}")
            a.wait_lg()
            self.w_release()

    def oproj_regs(self, m):
        a, e = self.a, self.a.e
        acc = V_O
        self.read_ofrags()
        for g in range(16):
            for mt in range(4):
                c = "0" if g == 0 else vr(acc + 16 * mt, 16)
                e(f"v_mfma_f32_32x32x16_bf16 {vr(acc+16*mt,16)}, {ar(g*16+mt*4,4)}, {vr(32+4*g,4)}, {c}")
        self.store_partial(m)

    def attention(self, m):
        a, e = self.a, self.a.e
        pair = (m == "A")
        ns = self.nslots(m)
        lbase = S_LKVPR if pair else S_LKV
        S, O, F, Q = V_S, V_O, V_F, V_Q
        e(f"s_lshl_b32 s{S_T1}, s{S_J}, 13")
        e(f"s_add_u32 s{S_T1}, s{S_T1}, {L_Q}")
        e(f"v_add_u32 v{V_T}, s{S_T1}, v{V_LIN}")
        for s in range(8):
            e(f"ds_read_b128 {vr(Q+4*s,4)}, v{V_T} offset:{s*1024}")
        e(f"v_add_u32 v{V_RD}, s{lbase}, v{V_CK}")
        for s in range(1, 8):
            e(f"v_xor_b32 v{V_RD+s}, {32*s}, v{V_RD}")
        a.wait_lg()

        def arrive(t):
            a.wait_vm(self.tok[("T", m, t)])
            if pair:
                e("s_barrier")
                if t > 0:
                    self.kv_free[(t - 1) % ns] = True
                    self.pump()

        def release(t):
            a.wait_lg()
            if not pair:
                self.kv_free[t % ns] = True
                self.pump()

        def maxes(t):
            b = S + 16 * t
            if t == 0:
                e(f"v_max_f32 v{V_M}, v{b}, v{b+1}")
                rng = range(1, 8)
            else:
                rng = range(8)
            for i in rng:
                e(f"v_max3_f32 v{V_M}, v{V_M}, v{b+2*i}, v{b+2*i+1}")

        for t in range(8):
            arrive(t)
            off = (t % ns) * 8192
            for s in range(8):
                e(f"ds_read_b128 {vr(F+4*s,4)}, v{V_RD+s} offset:{off}")
            if t > 0:
                maxes(t - 1)
            release(t)
            for s in range(8):
                c = "0" if s == 0 else vr(S + 16 * t, 16)
                e(f"v_mfma_f32_32x32x16_bf16 {vr(S+16*t,16)}, {vr(F+4*s,4)}, {vr(Q+4*s,4)}, {c}")
        e(f"s_lshl_b32 s{S_T1}, s{S_HF}, 7")
        e(f"v_xor_b32 v{V_T}, s{S_T1}, v{V_CV}")
        e(f"v_add_u32 v{V_RD}, s{lbase}, v{V_T}")
        for dt in range(1, 4):
            e(f"v_xor_b32 v{V_RD+dt}, {64*dt}, v{V_RD}")
        maxes(7)
        e(f"v_mov_b32 v{V_T}, v{V_M}")
        e(f"v_permlane32_swap_b32 v{V_M}, v{V_T}")
        e(f"v_max_f32 v{V_M}, v{V_M}, v{V_T}")
        e(f"v_mul_f32 v{V_NMC}, s{S_C}, v{V_M}")
        e(f"v_sub_f32 v{V_NMC}, 0, v{V_NMC}")
        e(f"v_mov_b32 v{V_L0}, 0")
        e(f"v_mov_b32 v{V_L1}, 0")

        def softmax_ops(t):
            b = S + 16 * t
            ops = []
            for i in range(16):
                ops.append(f"v_fma_f32 v{b+i}, v{b+i}, s{S_C}, v{V_NMC}")
            for i in range(16):
                ops.append(f"v_exp_f32 v{b+i}, v{b+i}")
            for i in range(16):
                l = V_L0 if i % 2 == 0 else V_L1
                ops.append(f"v_add_f32 v{l}, v{l}, v{b+i}")
            for k in range(8):
                ops.append(f"v_cvt_pk_bf16_f32 v{b+k}, v{b+2*k}, v{b+2*k+1}")
            return ops

        for op in softmax_ops(0):
            e(op)
        for t in range(8):
            T = 8 + t
            arrive(T)
            off = (T % ns) * 8192
            for dt in range(4):
                for ks in range(2):
                    for jh in range(2):
                        e(f"ds_read_b64_tr_b16 {vr(F+(dt*2+ks)*4+jh*2,2)}, v{V_RD+dt} offset:{off+ks*4096+jh*2048}")
            ops = softmax_ops(t + 1) if t < 7 else []
            for op in ops[:16]:
                e(op)
            release(T)
            rest = ops[16:]
            k = 0
            for ks in range(2):
                for dt in range(4):
                    c = "0" if (t == 0 and ks == 0) else vr(O + 16 * dt, 16)
                    e(f"v_mfma_f32_32x32x16_bf16 {vr(O+16*dt,16)}, {vr(F+(dt*2+ks)*4,4)}, {vr(S+16*t+4*ks,4)}, {c}")
                    for op in rest[k:k + 5]:
                        e(op)
                    k += 5
        if pair:
            self.kv_free = {0: True, 1: True, 2: True, 3: True}
        e(f"v_add_f32 v{V_L0}, v{V_L0}, v{V_L1}")
        e(f"v_mov_b32 v{V_T}, v{V_L0}")
        e(f"v_permlane32_swap_b32 v{V_L0}, v{V_T}")
        e(f"v_add_f32 v{V_L0}, v{V_L0}, v{V_T}")
        ml = F
        e(f"v_mov_b32 v{ml}, v{V_M}")
        e(f"v_mov_b32 v{ml+1}, v{V_L0}")
        a_own, a_par, a_mlw, a_mlr = V_RD, V_RD + 1, V_RD + 2, V_RD + 3
        e(f"v_add_u32 v{a_own}, s{S_LKV}, v{V_LIN}")
        e(f"v_add_u32 v{a_par}, s{S_LPART}, v{V_LIN}")
        e(f"v_lshlrev_b32 v{V_T}, 3, v{V_LANE}")
        if pair:
            e(f"s_lshl_b32 s{S_T1}, s{S_WAVE}, 9")
            e(f"s_add_u32 s{S_T1}, s{S_T1}, {L_Q}")
            e(f"s_xor_b32 s{S_T2}, s{S_T1}, 0x400")
        else:
            e(f"s_add_u32 s{S_T1}, s{S_LKV}, 8192")
            e(f"s_add_u32 s{S_T2}, s{S_LPART}, 8192")
        e(f"v_add_u32 v{a_mlw}, s{S_T1}, v{V_T}")
        e(f"v_add_u32 v{a_mlr}, s{S_T2}, v{V_T}")
        e(f"ds_write_b64 v{a_mlw}, {vr(ml,2)}")
        for i in range(8):
            e(f"ds_write_b128 v{a_own}, {vr(O+32+4*i,4)} offset:{i*1024}")
        a.wait_lg()
        e("s_barrier")
        mlp = F + 2
        e(f"ds_read_b64 {vr(mlp,2)}, v{a_mlr}")
        P = S
        for i in range(8):
            e(f"ds_read_b128 {vr(P+4*i,4)}, v{a_par} offset:{i*1024}")
        a.wait_lg(a.lg - 8)
        M_, f0, f1, Ls = F + 4, F + 5, F + 6, F + 7
        e(f"v_max_f32 v{M_}, v{ml}, v{mlp}")
        e(f"v_sub_f32 v{f0}, v{ml}, v{M_}")
        e(f"v_sub_f32 v{f1}, v{mlp}, v{M_}")
        e(f"v_mul_f32 v{f0}, s{S_C}, v{f0}")
        e(f"v_mul_f32 v{f1}, s{S_C}, v{f1}")
        e(f"v_exp_f32 v{f0}, v{f0}")
        e(f"v_exp_f32 v{f1}, v{f1}")
        e(f"v_mul_f32 v{Ls}, v{ml+1}, v{f0}")
        e(f"v_fma_f32 v{Ls}, v{mlp+1}, v{f1}, v{Ls}")
        e(f"v_rcp_f32 v{Ls}, v{Ls}")
        e(f"v_mul_f32 v{f0}, v{f0}, v{Ls}")
        e(f"v_mul_f32 v{f1}, v{f1}, v{Ls}")
        for i in range(32):
            e(f"v_mul_f32 v{O+i}, v{O+i}, v{f0}")
        a.wait_lg()
        for i in range(32):
            e(f"v_fma_f32 v{O+i}, v{P+i}, v{f1}, v{O+i}")
        pk = S + 32
        for k in range(16):
            e(f"v_cvt_pk_bf16_f32 v{pk+k}, v{O+2*k}, v{O+2*k+1}")
        for f in range(4):
            e(f"ds_write_b128 v{a_par}, {vr(pk+4*f,4)} offset:{f*1024}")
        a.wait_lg()
        e("s_barrier")

    def emit(self):
        a, e = self.a, self.a.e
        m1, m2 = self.mats
        self.stamp()
        tx = self.dma_x(m1)
        self.prefetch_wq()
        self.hooks[16] = self.prefetch_wo
        self.pump()
        a.wait_vm(tx)
        e("s_barrier")
        self.stamp()
        self.qproj(m1)
        self.dma_x(m2)
        self.stamp()
        self.attention(m1)
        self.stamp()
        self.oproj_stream(m1)
        e("s_barrier")
        self.stamp()
        self.wo_preload(m2)
        self.stamp()
        self.qproj(m2)
        self.stamp()
        self.attention(m2)
        self.stamp()
        self.oproj_regs(m2)
        self.stamp()
        if self.cfg.stamps:
            e("s_waitcnt vmcnt(0)")
            self.stamp()
            e(f"s_cmp_lg_u32 s{S_WAVE}, 0")
            e("s_cbranch_scc1 L_end")
            e(f"s_lshl_b32 s{S_T0}, s2, 8")
            e(f"s_add_u32 s{S_T0}, s{S_T0}, 0x4000000")
            e("v_mov_b32 v40, 0")
            for i in range(self.nst):
                e(f"v_mov_b32 v42, s{S_STAMP+2*i}")
                e(f"v_mov_b32 v43, s{S_STAMP+2*i+1}")
                e(f"buffer_store_dwordx2 v[42:43], v40, {sr(SRD['ws'])}, s{S_T0} offen offset:{8*i}")
                e("s_waitcnt vmcnt(0)")


def reduce_kernel(cfg):
    a = Asm()
    e = a.e
    a.raw(".globl reduce_kernel")
    a.raw(".p2align 8")
    a.raw(".type reduce_kernel,@function")
    a.raw("reduce_kernel:")
    e("s_cmp_ge_u32 s2, 256")
    e("s_cbranch_scc1 L_rend")
    e("s_load_dwordx2 s[4:5], s[0:1], 80")
    e("s_load_dwordx2 s[6:7], s[0:1], 96")
    e("s_lshr_b32 s8, s2, 3")
    e("s_and_b32 s9, s2, 7")
    e("s_lshr_b32 s10, s8, 1")
    e("s_and_b32 s11, s8, 1")
    e("v_lshlrev_b32 v1, 4, v0")
    e("s_lshl_b32 s12, s10, 20")
    e("s_lshl_b32 s13, s11, 15")
    e("s_add_u32 s12, s12, s13")
    e("s_lshl_b32 s13, s9, 12")
    e("s_add_u32 s12, s12, s13")
    e("s_waitcnt lgkmcnt(0)")
    e("s_mov_b32 s16, s6"); e("s_and_b32 s17, s7, 0xffff"); e("s_mov_b32 s18, 268435456"); e("s_mov_b32 s19, 0x20000")
    e("s_mov_b32 s20, s4"); e("s_and_b32 s21, s5, 0xffff"); e("s_mov_b32 s22, 1048576"); e("s_mov_b32 s23, 0x20000")
    toks = []
    for i in range(16):
        e(f"s_add_u32 s14, s12, {i*65536}")
        toks.append(e(f"buffer_load_dwordx4 {vr(16+4*i,4)}, v1, s[16:19], s14 offen{cfg.red_pol}"))
    e("v_and_b32 v2, 31, v0")
    e("v_bfe_u32 v3, v0, 5, 1")
    e("v_lshrrev_b32 v4, 6, v0")
    e("s_lshl_b32 s13, s9, 2")
    e("v_add_u32 v4, s13, v4")
    e("v_lshlrev_b32 v4, 5, v4")
    e("v_lshl_add_u32 v4, v3, 4, v4")
    e("v_lshl_add_u32 v4, v2, 11, v4")
    e("s_lshl_b32 s13, s10, 16")
    e("s_lshl_b32 s14, s11, 10")
    e("s_add_u32 s13, s13, s14")
    for i in range(16):
        a.wait_vm(toks[i])
        for d in range(4):
            src = 16 + 4 * i + d
            if i == 0:
                e(f"v_lshlrev_b32 v{8+2*d}, 16, v{src}")
                e(f"v_and_b32 v{9+2*d}, 0xffff0000, v{src}")
            else:
                e(f"v_lshlrev_b32 v5, 16, v{src}")
                e(f"v_and_b32 v6, 0xffff0000, v{src}")
                e(f"v_add_f32 v{8+2*d}, v{8+2*d}, v5")
                e(f"v_add_f32 v{9+2*d}, v{9+2*d}, v6")
    for d in range(4):
        e(f"v_cvt_pk_bf16_f32 v{80+d}, v{8+2*d}, v{9+2*d}")
    e("buffer_store_dwordx4 v[80:83], v4, s[20:23], s13 offen")
    a.raw("L_rend:")
    e("s_endpgm")
    return a.finalize()


def descriptor(name, vgpr, accum, sgpr=102):
    return "\n".join([
        f".amdhsa_kernel {name}",
        f"  .amdhsa_next_free_vgpr {vgpr}",
        f"  .amdhsa_next_free_sgpr {sgpr}",
        f"  .amdhsa_accum_offset {accum}",
        "  .amdhsa_group_segment_fixed_size 0",
        "  .amdhsa_kernarg_size 104",
        "  .amdhsa_user_sgpr_count 2",
        "  .amdhsa_user_sgpr_kernarg_segment_ptr 1",
        "  .amdhsa_system_sgpr_workgroup_id_x 1",
        ".end_amdhsa_kernel", ""])


def generate(cfg):
    a = Asm()
    a.raw(f"{NAME}_kernel:")
    setup_common(a, cfg)
    e = a.e
    if cfg.force_order is None:
        e(f"s_bitcmp1_b32 s2, {cfg.order_bit}")
        e("s_cbranch_scc1 L_progBA")
        Prog(a, cfg, "AB").emit()
        e("s_endpgm")
        a.raw("L_progBA:")
        e("s_nop 15")
        e("s_nop 3")
        a.reset_counters()
        Prog(a, cfg, "BA").emit()
    else:
        Prog(a, cfg, cfg.force_order).emit()
    a.raw("L_end:")
    e("s_endpgm")
    body = a.finalize()
    out = HEADER
    out += f"; @launch kernel={NAME}_kernel grid=(256,1,1) block=(256,1,1) lds={LDS_BYTES}\n"
    out += "; @launch kernel=reduce_kernel grid=(256,1,1) block=(256,1,1) lds=0\n"
    out += '.amdgcn_target "amdgcn-amd-amdhsa--gfx950"\n.text\n'
    out += f".globl {NAME}_kernel\n.p2align 8\n.type {NAME}_kernel,@function\n"
    out += body
    out += reduce_kernel(cfg)
    out += '.section .rodata,"a"\n.p2align 6\n'
    out += descriptor(NAME + "_kernel", 512, 256)
    out += ".p2align 6\n"
    out += descriptor("reduce_kernel", 88, 88, 32)
    return out


if __name__ == "__main__":
    cfg = Cfg()
    outp = "cdna_kernels/" + NAME + ".s"
    for arg in sys.argv[1:]:
        if arg.startswith("-o"):
            outp = arg[2:]
        else:
            k, v = arg.split("=", 1)
            cur = getattr(cfg, k)
            if isinstance(cur, bool):
                v = v in ("1", "True", "true")
            elif isinstance(cur, int):
                v = int(v)
            elif v == "None":
                v = None
            elif k.endswith("_pol"):
                v = (" " + v.replace("+", " ")) if v else ""
            setattr(cfg, k, v)
    open(outp, "w").write(generate(cfg))
    print("wrote", outp)
```
